```python
import torch

def _softmax(x, axis=-1):
    return torch.softmax(x, dim=axis)
def _gelu(x):
    return torch.nn.functional.gelu(x, approximate="tanh")
def _silu(x):
    return torch.nn.functional.silu(x)
def _sigmoid(x):
    return torch.sigmoid(x)
def _layernorm(x, axis=-1, eps=1e-5):
    m = x.mean(dim=axis, keepdim=True)
    v = x.var(dim=axis, keepdim=True, unbiased=False)
    return (x - m) / torch.sqrt(v + eps)
def _scatter_add(tgt, idx, src, axis=0):
    return tgt.clone().index_add_(axis, idx, src)
def _segment_sum(src, seg, n):
    out = torch.zeros((n,) + src.shape[1:], dtype=src.dtype)
    return out.index_add_(0, seg, src)
def _pad(x, pw):
    flat = tuple(v for pair in reversed(pw) for v in pair)
    return torch.nn.functional.pad(x, flat)

kernel_name = 'interleave_layers__linear_attn_block__glu_gated_swiglu__prompt'

def setup_inputs():

    _w = (lambda a: (lambda t: t.to(torch.bfloat16) if t.is_floating_point() else t)(torch.as_tensor(a)))
    def _A_setup():
        B, S, D = 1, 2048, 640
        return {
            "x": _w((lambda *s: torch.randn(*s, dtype=torch.bfloat16) * 0.05)(B, S, D)),
            "wqkv": _w((lambda *s: torch.randn(*s, dtype=torch.bfloat16) * 0.05)(D, 3 * D)),
            "wo": _w((lambda *s: torch.randn(*s, dtype=torch.bfloat16) * 0.05)(D, D)),
        }
    _A_in = _A_setup()

    def _B_setup():
        B, S, D, F = 1, 2048, 640, 1536
        return {
            "x": _w((lambda *s: torch.randn(*s, dtype=torch.bfloat16) * 0.05)(B, S, D)),
            "w1": _w((lambda *s: torch.randn(*s, dtype=torch.bfloat16) * 0.4)(D, F) * (2.0 / D) ** 0.5),
            "w3": _w((lambda *s: torch.randn(*s, dtype=torch.bfloat16) * 0.4)(D, F) * (2.0 / D) ** 0.5),
            "w2": _w((lambda *s: torch.randn(*s, dtype=torch.bfloat16) * 0.4)(F, D) * (2.0 / F) ** 0.5),
        }
    _B_in = _B_setup()

    return {
        "A_x": _A_in["x"],
        "A_wqkv": _A_in["wqkv"],
        "A_wo": _A_in["wo"],
        "B_x": _B_in["x"],
        "B_w1": _B_in["w1"],
        "B_w3": _B_in["w3"],
        "B_w2": _B_in["w2"],
    }

def reference(A_x, A_wqkv, A_wo, B_x, B_w1, B_w3, B_w2):
    def _A_ref(x, wqkv, wo):
        B, S, D = x.shape
        H = 32; Dh = D // H
        qkv = (lambda x, *d: x.permute(*d))((x @ wqkv).reshape(B, S, 3, H, Dh), 2, 0, 3, 1, 4)
        q, k, v = qkv[0], qkv[1], qkv[2]
        phi = lambda t: torch.where(t > 0, t + 1, torch.exp(t)) + 1e-6
        pq, pk = phi(q), phi(k)
        kv = torch.einsum("bhsd,bhse->bhde", pk, v)
        z = torch.einsum("bhsd->bhd", pk)
        num = torch.einsum("bhqd,bhde->bhqe", pq, kv)
        den = torch.einsum("bhqd,bhd->bhq", pq, z)[..., None] + 1e-6
        o = num / den
        return (lambda x, *d: x.permute(*d))(o, 0, 2, 1, 3).reshape(B, S, D) @ wo

    def _B_ref(x, w1, w3, w2):
        gate = torch.einsum("bsd,df->bsf", x, w1)
        up = torch.einsum("bsd,df->bsf", x, w3)
        h = _silu(gate) * up
        out = torch.einsum("bsf,fd->bsd", h, w2)
        return out

    x = A_x
    x = x + _A_ref(_layernorm(x, axis=-1), A_wqkv, A_wo)
    x = x + _B_ref(_layernorm(x, axis=-1), B_w1, B_w3, B_w2)
    x = x + _A_ref(_layernorm(x, axis=-1), A_wqkv, A_wo)
    x = x + _B_ref(_layernorm(x, axis=-1), B_w1, B_w3, B_w2)
    return x
```

```python
import re

class Asm:
    def __init__(self):
        self.l = []
        self.lab = 0
    def __call__(self, s=""):
        for x in s.split("\n"):
            x = x.strip()
            if not x: continue
            self.l.append(x if x.endswith(":") else "    " + x)
    def label(self, base="L"):
        self.lab += 1
        return f"{base}_{self.lab}"
    def text(self, fix=False):
        l = fix_hazards(self.l) if fix else self.l
        return "\n".join(l) + "\n"

def kernel_header(name):
    return f""".text
.globl {name}
.p2align 8
.type {name},@function
{name}:
"""
def kernel_desc(name, vgpr, sgpr, accum):
    return f""".section .rodata,"a"
.p2align 6
.amdhsa_kernel {name}
  .amdhsa_next_free_vgpr {vgpr}
  .amdhsa_next_free_sgpr {sgpr}
  .amdhsa_accum_offset {accum}
  .amdhsa_group_segment_fixed_size 0
  .amdhsa_kernarg_size 80
  .amdhsa_user_sgpr_count 2
  .amdhsa_user_sgpr_kernarg_segment_ptr 1
  .amdhsa_system_sgpr_workgroup_id_x 1
.end_amdhsa_kernel
"""

_R = re.compile(r"^(-|abs\(|\|)?([vas])(\d+)\)?\|?$")
_RR = re.compile(r"^(-|abs\()?([vas])\[(\d+):(\d+)\]\)?$")
def regs(op):
    op = op.strip()
    m = _R.match(op)
    if m: return {(m.group(2), int(m.group(3)))}
    m = _RR.match(op)
    if m: return {(m.group(2), i) for i in range(int(m.group(3)), int(m.group(4)) + 1)}
    if op in ("vcc", "vcc_lo", "vcc_hi"): return {("s", "vcc")}
    if op in ("exec", "exec_lo", "exec_hi"): return {("s", "exec")}
    if op == "m0": return {("s", "m0")}
    return set()

TRANS = ("v_exp_f32", "v_log_f32", "v_rcp_f32", "v_rsq_f32", "v_sqrt_f32", "v_sin_f32", "v_cos_f32", "v_rcp_iflag_f32")

class I:
    pass

def parse(line):
    s = line.split(";")[0].strip()
    if not s or s.endswith(":") or s.startswith("."): return None
    parts = s.split(None, 1)
    op = parts[0]
    rest = parts[1] if len(parts) > 1 else ""
    ops = []; cur = ""; dep = 0
    for ch in rest:
        if ch == "[": dep += 1
        if ch == "]": dep -= 1
        if ch == "," and dep == 0: ops.append(cur.strip()); cur = ""
        else: cur += ch
    if cur.strip(): ops.append(cur.strip())
    mods = ""
    if ops:
        t = ops[-1].split(None, 1)
        ops[-1] = t[0]
        mods = t[1] if len(t) > 1 else ""
    i = I(); i.op = op; i.ops = ops; i.mods = mods
    i.w = set(); i.r = set(); i.kind = "other"; i.states = 1
    R = [regs(o) for o in ops]
    base = re.sub(r"_(e32|e64|sdwa|dpp)$", "", op)
    i.base = base
    if op.startswith("v_mfma"):
        i.kind = "mfma"; i.w = R[0]; i.A = R[1]; i.B = R[2]; i.C = R[3]; i.r = R[1] | R[2] | R[3]
        i.passes = 8 if "32x32" in op else 4
    elif op.startswith("v_"):
        i.kind = "valu"
        if base.startswith("v_permlane") and "swap" in base:
            i.w = R[0] | R[1]; i.r = R[0] | R[1]
        elif base in ("v_add_co_u32", "v_sub_co_u32", "v_addc_co_u32", "v_subb_co_u32", "v_subrev_co_u32"):
            i.w = R[0] | R[1]
            for x in R[2:]: i.r |= x
        else:
            i.w = R[0]
            for x in R[1:]: i.r |= x
            if base.startswith(("v_fmac", "v_dot2c", "v_pk_fmac", "v_writelane")): i.r |= R[0]
            if base.startswith("v_cmpx"): i.w |= {("s", "exec")}
        i.trans = base in TRANS
        i.dpp = ("dpp" in op) or ("row_" in mods) or ("quad_perm" in mods)
        i.sdwa = ("sdwa" in op and "dst_sel:DWORD" not in mods)
    elif op.startswith("ds_"):
        i.kind = "ds"
        if op.startswith(("ds_read", "ds_bpermute", "ds_permute", "ds_swizzle")):
            i.w = R[0]
            for x in R[1:]: i.r |= x
        else:
            for x in R: i.r |= x
    elif op.startswith(("buffer_", "global_")):
        i.kind = "vmem"
        i.lds = (" lds" in " " + mods) or ("_lds_" in op)
        if "load" in op and not i.lds:
            i.w = R[0]
            for x in R[1:]: i.r |= x
        else:
            for x in R: i.r |= x
            if "atomic" in op and "sc0" in mods: i.w = R[0]
        i.wide_store = ("store_dwordx3" in op or "store_dwordx4" in op)
        if i.wide_store: i.data = R[0] if op.startswith("buffer_") else R[1]
    elif op.startswith("s_"):
        i.kind = "salu"
        if op == "s_nop": i.states = int(ops[0], 0) + 1
        elif op.startswith(("s_cmp", "s_cbranch", "s_branch", "s_waitcnt", "s_barrier", "s_endpgm", "s_sleep", "s_setprio", "s_bitcmp")):
            for x in R: i.r |= x
        else:
            if R: i.w = R[0]
            for x in R[1:]: i.r |= x
            if "saveexec" in op: i.w |= {("s", "exec")}
    return i

def vg(s): return {x for x in s if x[0] in "va"}
def sg(s): return {x for x in s if x[0] == "s"}

def need(p, c):
    n = 0
    if p.kind == "valu":
        pw = vg(p.w); ps = sg(p.w)
        if c.kind == "mfma" and (pw & c.r): n = max(n, 2)
        if c.kind == "mfma" and ("s", "exec") in ps: n = max(n, 4)
        if c.kind == "valu":
            if p.trans and not c.trans and (pw & c.r): n = max(n, 1)
            if p.trans and c.trans and (pw & c.r): n = max(n, 1)
            if c.base.startswith("v_permlane") and (pw & c.r): n = max(n, 2)
            if c.base in ("v_readfirstlane_b32", "v_readlane_b32") and (pw & c.r): n = max(n, 1)
            if c.dpp and (pw & c.r): n = max(n, 2)
            if c.dpp and ("s", "exec") in ps: n = max(n, 5)
            if p.sdwa and (pw & (c.r | c.w)): n = max(n, 1)
            if ps & c.r: n = max(n, 4 if c.base in ("v_readlane_b32", "v_writelane_b32") else 2)
            if c.base.startswith("v_cndmask") and len(c.ops) == 3 and ("s", "vcc") in ps: n = max(n, 2)
        if c.kind == "vmem" and (ps & c.r): n = max(n, 5)
        if c.kind == "salu" and (ps & c.r): n = max(n, 2)
    if p.kind == "mfma":
        big = {4: 8, 8: 12}[p.passes]
        if c.kind == "mfma":
            if p.w & (c.A | c.B): n = max(n, big)
            if p.w & c.C and not (p.w == c.C and p.passes == c.passes): n = max(n, big - 2)
            if p.w & c.w and not (p.w & c.C): n = max(n, big)
        elif c.kind in ("valu", "ds", "vmem"):
            if p.w & (c.r | c.w): n = max(n, big)
            if c.kind == "valu" and (p.C & c.w): n = max(n, {4: 3, 8: 7}[p.passes])
    if p.kind == "salu":
        if ("s", "m0") in p.w and c.kind == "vmem" and c.lds: n = max(n, 1)
    if p.kind == "vmem" and p.wide_store:
        if p.data & c.w: n = max(n, 2 if c.kind in ("valu", "mfma") else 1)
    return n

def fix_hazards(lines):
    out = []; hist = []
    for ln in lines:
        c = parse(ln)
        if c is None:
            out.append(ln); continue
        dist = 0; pad = 0
        for p in reversed(hist):
            k = need(p, c)
            if k - dist > pad: pad = k - dist
            dist += p.states
            if dist >= 20: break
        while pad > 0:
            q = min(pad, 16)
            out.append(f"    s_nop {q-1}")
            hist.append(parse(f"s_nop {q-1}"))
            pad -= q
        out.append(ln)
        hist.append(c)
        if len(hist) > 40: hist = hist[-30:]
    return out
```

```python
from asmlib import *
from layout import *

K0_WGS = 544
K0_LDS = 24*1024 + 256

def gen_k0(name, prefetch=None):
    a = Asm()
    a(f"""
    s_cmp_ge_u32 s2, {K0_WGS}
    s_cbranch_scc1 {name}_end
    s_load_dwordx16 s[16:31], s[0:1], 0
    s_load_dwordx2 s[34:35], s[0:1], 72
    v_lshrrev_b32 v1, 6, v0
    v_and_b32 v2, 63, v0              ; lane
    v_lshlrev_b32 v3, 4, v2           ; lane*16
    v_readfirstlane_b32 s12, v1       ; wave
    v_and_b32 v4, 3, v2               ; c = lane&3
    v_bfe_u32 v5, v2, 2, 2            ; r = (lane>>2)&3
    v_lshrrev_b32 v6, 4, v2           ; g
    v_lshl_add_u32 v5, v6, 3, v5      ; 8g + r
    v_and_b32 v7, 15, v2              ; n
    v_mov_b32 v40, 0x3f803f80
    v_mov_b32 v41, 0x3f803f80
    v_mov_b32 v42, 0x3f803f80
    v_mov_b32 v43, 0x3f803f80
    s_mov_b32 s7, 0x20000
    s_mov_b32 s11, 0x20000
    s_mov_b32 s10, {WS_SIZE}
    s_waitcnt lgkmcnt(0)
    s_mov_b32 s8, s34
    s_and_b32 s9, s35, 0xffff
    s_cmp_ge_u32 s2, 416
    s_cbranch_scc1 {name}_x
    s_cmp_ge_u32 s2, 256
    s_cbranch_scc1 {name}_w13
    s_cmp_ge_u32 s2, 160
    s_cbranch_scc1 {name}_w2
    s_cmp_ge_u32 s2, 120
    s_cbranch_scc1 {name}_wo
    """)
    def load_unit(RB, stride, perm=False):
        upr = RB // 16; n = 32*upr // 64 // 4
        magic = {40: 1639, 48: 1366}[upr]
        a(f"s_mul_i32 s15, s12, {n*64}")
        a(f"s_lshl_b32 s36, s15, 4")
        for t in range(n):
            a(f"v_add_u32 v10, s15, v2")
            if t: a(f"v_add_u32 v10, {t*64}, v10")
            a(f"v_mul_u32_u24 v11, {magic}, v10")
            a(f"v_lshrrev_b32 v11, 16, v11          ; row")
            a(f"v_mul_u32_u24 v12, {upr}, v11")
            a(f"v_sub_u32 v12, v10, v12")
            if perm:
                a(f"""v_add_u32 v11, s14, v11        ; k slot
                v_mul_u32_u24 v13, 1639, v11
                v_lshrrev_b32 v13, 16, v13           ; c
                v_mul_u32_u24 v13, 40, v13           ; 40c
                v_sub_u32 v14, v11, v13              ; r
                v_bfe_u32 v15, v14, 2, 1             ; h (chunk<4)
                v_lshrrev_b32 v16, 3, v14            ; chunk
                v_and_b32 v17, 3, v14
                v_lshl_add_u32 v16, v16, 2, v17      ; e = 4*chunk + j%4
                v_and_b32 v17, 1, v14                ; h (chunk 4)
                v_bfe_u32 v18, v14, 1, 2
                v_add_u32 v18, 16, v18               ; e
                v_cmp_le_u32 vcc, 32, v14
                v_cndmask_b32 v15, v15, v17, vcc
                v_cndmask_b32 v16, v16, v18, vcc
                v_mul_u32_u24 v15, 20, v15
                v_add3_u32 v11, v13, v15, v16""")
            a(f"v_mul_u32_u24 v11, {stride}, v11")
            a(f"v_lshl_add_u32 v11, v12, 4, v11")
            a(f"s_add_u32 m0, s36, {t*1024}")
            a(f"buffer_load_dwordx4 v11, s[4:7], s13 offen lds")
        a(f"v_mul_u32_u24 v20, {RB}, v5")
    def wait_unit():
        a("s_waitcnt vmcnt(0)")
        a("s_barrier")
    def rd(dst, base, off, RB):
        a(f"ds_read_b64_tr_b16 v[{dst}:{dst+1}], v{base} offset:{off}")
        a(f"ds_read_b64_tr_b16 v[{dst+2}:{dst+3}], v{base} offset:{off+4*RB}")

    a(f"""
    s_mov_b32 s4, s18
    s_and_b32 s5, s19, 0xffff
    s_mov_b32 s6, {640*1920*2}
    s_mul_i32 s40, s2, 10923
    s_lshr_b32 s40, s40, 16
    s_mul_i32 s41, s40, 6
    s_sub_u32 s41, s2, s41              ; r
    s_lshr_b32 s42, s41, 1              ; part
    s_and_b32 s43, s41, 1               ; half
    s_mul_i32 s13, s40, {32*3840}
    s_mul_i32 s44, s41, 640
    s_add_u32 s13, s13, s44
    """)
    load_unit(640, 3840)
    a(f"""
    s_mul_i32 s44, s12, 160
    v_add_u32 v20, s44, v20
    v_lshl_add_u32 v21, v4, 3, v20      ; baseN
    v_and_b32 v23, 1, v4
    v_mul_u32_u24 v23, 40, v23
    v_add_u32 v22, v23, v20
    s_lshl_b32 s45, s43, 3
    s_lshl_b32 s46, s12, 1
    s_add_u32 s45, s45, s46             ; c
    s_mul_i32 s46, s45, {160*KB}
    s_add_u32 s46, s46, {W1F}
    s_mul_i32 s47, s40, {3*KB}
    s_add_u32 s47, s47, {100*KB}
    s_mul_i32 s48, s40, {5*KB}
    s_cmp_eq_u32 s42, 0
    s_cselect_b32 s47, s47, s48
    s_cselect_b32 s49, 2, 4
    s_cselect_b32 s50, 5, 0
    s_cselect_b32 s51, 7, 4
    s_lshl_b32 s49, s49, 10
    s_add_u32 s46, s46, s47
    s_add_u32 s49, s49, s46
    s_cmp_eq_u32 s42, 2
    s_cselect_b32 s47, 2, 0
    s_add_u32 s50, s50, s47
    s_lshl_b32 s47, s47, 10
    s_add_u32 s46, s46, s47
    s_lshl_b32 s50, s50, 6
    s_lshl_b32 s51, s51, 6
    s_lshl_b32 s52, s40, 4
    s_add_u32 s52, s52, s45
    s_lshl_b32 s52, s52, 9              ; (kt*16+c)*512
    s_add_u32 s52, s52, {CS1P}
    s_add_u32 s50, s50, s52
    s_add_u32 s51, s51, s52
    v_cmp_gt_u32 s[54:55], 8, v7        ; n<8
    v_cmp_eq_u32 s[58:59], 0, v7
    s_not_b64 s[56:57], s[54:55]
    s_cmp_eq_u32 s42, 2
    s_cselect_b64 s[56:57], s[56:57], s[54:55]
    s_mov_b32 s62, 0
    s_mov_b32 s63, -1
    s_mov_b32 s64, -1
    s_mov_b32 s65, 0
    s_cselect_b64 s[62:63], s[62:63], s[64:65]
    s_cmp_eq_u32 s42, 0
    s_cselect_b64 s[60:61], -1, s[56:57]
    s_cselect_b64 s[62:63], -1, s[62:63]
    s_and_b64 s[62:63], s[62:63], s[58:59]
    v_lshlrev_b32 v24, 4, v6
    """)
    wait_unit()
    for i in range(2):
        rd(48+12*i, 21, 80*i, 640); rd(52+12*i, 21, 80*i+40, 640); rd(56+12*i, 22, 80*i+32, 640)
    a("s_waitcnt lgkmcnt(0)")
    for i in range(2):
        for j in range(4): a(f"v_cndmask_b32 v{56+12*i+j}, 0, v{56+12*i+j}, s[56:57]")
    for i in range(6): a(f"v_mfma_f32_16x16x32_bf16 v[{80+4*i}:{83+4*i}], v[{48+4*i}:{51+4*i}], v[40:43], 0")
    for i in range(2):
        if i:
            a(f"s_add_u32 s46, s46, {160*KB}"); a(f"s_add_u32 s49, s49, {160*KB}")
        a(f"buffer_store_dwordx4 v[{48+12*i}:{51+12*i}], v3, s[8:11], s46 offen sc1")
        a(f"buffer_store_dwordx4 v[{52+12*i}:{55+12*i}], v3, s[8:11], s46 offen offset:1024 sc1")
        a(f"s_mov_b64 exec, s[60:61]")
        a(f"buffer_store_dwordx4 v[{56+12*i}:{59+12*i}], v3, s[8:11], s49 offen sc1")
        a(f"s_mov_b64 exec, -1")
    for i in range(2):
        a(f"s_mov_b64 exec, s[58:59]")
        a(f"buffer_store_dwordx4 v[{80+12*i}:{83+12*i}], v24, s[8:11], s50 offen offset:{512*i} sc1")
        a(f"buffer_store_dwordx4 v[{84+12*i}:{87+12*i}], v24, s[8:11], s50 offen offset:{512*i+64} sc1")
        a(f"s_mov_b64 exec, s[62:63]")
        a(f"buffer_store_dwordx4 v[{88+12*i}:{91+12*i}], v24, s[8:11], s51 offen offset:{512*i} sc1")
    a("s_endpgm")

    def n80(tag, ptr, nbytes, first, KT, dst, perm):
        a(f"{name}_{tag}:")
        a(f"""
        s_mov_b32 s4, s{ptr}
        s_and_b32 s5, s{ptr+1}, 0xffff
        s_mov_b32 s6, {nbytes}
        s_sub_u32 s40, s2, {first}
        s_and_b32 s43, s40, 1               ; half
        s_lshr_b32 s40, s40, 1              ; kt
        s_mul_i32 s13, s43, 640
        s_lshl_b32 s14, s40, 5
        """)
        if not perm:
            a(f"s_mul_i32 s44, s40, {32*1280}")
            a(f"s_add_u32 s13, s13, s44")
        load_unit(640, 1280, perm)
        a(f"""
        s_mul_i32 s44, s12, 160
        v_add_u32 v20, s44, v20
        v_lshl_add_u32 v21, v4, 3, v20      ; baseN
        v_lshl_add_u32 v22, v4, 4, v20      ; baseP
        s_lshl_b32 s45, s43, 2
        s_add_u32 s45, s45, s12             ; cb
        s_mul_i32 s45, s45, {KT}
        s_add_u32 s45, s45, s40
        s_mul_i32 s46, s45, {5*KB}
        s_add_u32 s46, s46, {dst}
        s_add_u32 s47, s46, {4*KB}
        """)
        wait_unit()
        rd(48, 22, 0, 640); rd(52, 22, 8, 640); rd(56, 22, 64, 640); rd(60, 22, 72, 640); rd(64, 21, 128, 640)
        for t in range(5):
            a(f"s_waitcnt lgkmcnt({8-2*t})")
            if t < 4: a(f"buffer_store_dwordx4 v[{48+4*t}:{51+4*t}], v3, s[8:11], s46 offen offset:{1024*t} sc1")
            else: a(f"buffer_store_dwordx4 v[{48+4*t}:{51+4*t}], v3, s[8:11], s47 offen sc1")
        a("s_endpgm")
    n80("wo", 20, 640*640*2, 120, 20, W2F, True)
    n80("w2", 28, 1536*640*2, 160, 48, W4F, False)

    a(f"{name}_w13:")
    a(f"""
    s_sub_u32 s40, s2, 256
    s_and_b32 s43, s40, 3               ; quarter
    s_bfe_u32 s42, s40, 0x10002         ; mat
    s_lshr_b32 s40, s40, 3              ; kt
    s_cmp_eq_u32 s42, 0
    s_cselect_b32 s4, s24, s26
    s_cselect_b32 s5, s25, s27
    s_and_b32 s5, s5, 0xffff
    s_mov_b32 s6, {640*1536*2}
    s_mul_i32 s13, s40, {32*3072}
    s_mul_i32 s44, s43, 768
    s_add_u32 s13, s13, s44
    """)
    load_unit(768, 3072)
    a(f"""
    s_mul_i32 s44, s12, 192
    v_add_u32 v20, s44, v20
    v_lshl_add_u32 v21, v4, 3, v20      ; baseN
    v_lshl_add_u32 v22, v4, 4, v20      ; baseP
    s_lshl_b32 s45, s43, 2
    s_add_u32 s45, s45, s12             ; cb
    s_mul_i32 s46, s45, 20
    s_add_u32 s46, s46, s40
    s_mul_i32 s46, s46, 12
    s_add_u32 s46, s46, s42
    s_lshl_b32 s46, s46, 10
    s_add_u32 s46, s46, {W3F}
    s_lshl_b32 s50, s40, 4
    s_add_u32 s50, s50, s45
    s_mul_i32 s50, s50, 12
    s_add_u32 s50, s50, s42
    s_lshl_b32 s50, s50, 6
    s_add_u32 s50, s50, {CS3P}
    v_cmp_eq_u32 s[58:59], 0, v7
    v_lshlrev_b32 v24, 4, v6
    """)
    wait_unit()
    for nh in range(2):
        rd(48+12*nh, 22, 96*nh, 768); rd(52+12*nh, 22, 96*nh+8, 768); rd(56+12*nh, 21, 96*nh+64, 768)
    a("s_waitcnt lgkmcnt(0)")
    for i in range(6): a(f"v_mfma_f32_16x16x32_bf16 v[{80+4*i}:{83+4*i}], v[{48+4*i}:{51+4*i}], v[40:43], 0")
    for i in range(6):
        a(f"buffer_store_dwordx4 v[{48+4*i}:{51+4*i}], v3, s[8:11], s46 offen offset:{2048*(i%2)} sc1")
        if i % 2 == 1: a(f"s_add_u32 s46, s46, 4096")
    a(f"s_mov_b64 exec, s[58:59]")
    for i in range(6):
        a(f"buffer_store_dwordx4 v[{80+4*i}:{83+4*i}], v24, s[8:11], s50 offen offset:{128*i} sc1")
    a("s_endpgm")

    a(f"{name}_x:")
    a(f"""
    s_mov_b32 s4, s16
    s_and_b32 s5, s17, 0xffff
    s_mov_b32 s6, {XSZ}
    s_sub_u32 s40, s2, 416              ; mt
    s_mul_i32 s13, s40, {16*1280}
    s_mul_i32 s44, s12, 320
    s_add_u32 s13, s13, s44
    v_mul_u32_u24 v10, 1280, v7
    v_lshl_add_u32 v10, v6, 4, v10
    """)
    for t in range(5): a(f"buffer_load_dwordx4 v[{48+4*t}:{51+4*t}], v10, s[4:7], s13 offen offset:{64*t}")
    a(f"""
    s_lshr_b32 s41, s40, 3              ; rb
    s_and_b32 s42, s40, 7
    s_mul_i32 s46, s41, 20
    s_mul_i32 s47, s12, 5
    s_add_u32 s46, s46, s47
    s_lshl_b32 s46, s46, 3
    s_add_u32 s46, s46, s42
    s_lshl_b32 s46, s46, 10
    s_add_u32 s46, s46, {XF[0]}
    s_lshl_b32 s50, s41, 3
    s_lshl_b32 s51, s12, 1
    s_add_u32 s50, s50, s51
    s_lshl_b32 s50, s50, 10
    s_lshl_b32 s51, s42, 7
    s_add_u32 s50, s50, s51
    s_add_u32 s50, s50, {STX[0]}
    v_lshlrev_b32 v24, 3, v7
    v_lshl_add_u32 v24, v6, 10, v24
    v_mov_b32 v30, 0
    v_mov_b32 v31, 0
    v_mov_b32 v32, 0
    v_mov_b32 v33, 0
    s_lshl_b32 s52, s40, 10
    s_add_u32 s52, s52, {FLAGS}
    v_cmp_gt_u32 vcc, 64, v0
    s_and_saveexec_b64 s[54:55], vcc
    s_cbranch_execz {name}_nz
    buffer_store_dwordx4 v[30:33], v3, s[8:11], s52 offen sc1
    {name}_nz:
    s_mov_b64 exec, -1
    s_waitcnt vmcnt(0)
    """)
    for t in range(5):
        a(f"buffer_store_dwordx4 v[{48+4*t}:{51+4*t}], v3, s[8:11], s46 offen sc1")
        a(f"s_add_u32 s46, s46, {8*KB}")
    for r in range(48, 68):
        a(f"""v_lshlrev_b32 v34, 16, v{r}
        v_and_b32 v35, 0xffff0000, v{r}
        v_add_f32 v30, v30, v34
        v_fmac_f32 v31, v34, v34
        v_add_f32 v30, v30, v35
        v_fmac_f32 v31, v35, v35""")
    for op in ("v_permlane32_swap_b32", "v_permlane16_swap_b32"):
        a(f"""v_mov_b32 v34, v30
        v_mov_b32 v35, v31
        {op} v34, v30
        {op} v35, v31
        v_add_f32 v30, v30, v34
        v_add_f32 v31, v31, v35""")
    a(f"""
    v_cmp_gt_u32 vcc, 16, v2
    v_cndmask_b32 v30, 0, v30, vcc
    v_cndmask_b32 v31, 0, v31, vcc
    s_mov_b32 exec_hi, 0
    buffer_store_dwordx2 v[30:31], v24, s[8:11], s50 offen sc1
    """)
    a(f"{name}_end:")
    a("s_endpgm")
    return a.text(fix=True)

if __name__ == "__main__":
    s = f"; @launch kernel=k0_kernel grid=({K0_WGS},1,1) block=(256,1,1) lds={K0_LDS}\n.amdgcn_target \"amdgcn-amd-amdhsa--gfx950\"\n"
    s += kernel_header("k0_kernel") + gen_k0("k0_kernel") + kernel_desc("k0_kernel", 104, 72, 104)
    open("k0.s", "w").write(s)
```

```python
S, D, F = 2048, 640, 1536
KB = 1024
_off = [0]
def _al(n, a=65536):
    o = _off[0]; _off[0] = (o + n + a - 1) // a * a; return o
FLAGS = _al(128*KB)
XSZ = S*D*2; HSZ = S*F*2
XF = [_al(XSZ) for _ in range(2)]
OF = [_al(XSZ) for _ in range(2)]
X1F = [_al(XSZ) for _ in range(2)]
HF = [_al(HSZ) for _ in range(2)]
STSZ = 16*8*128*8
STX = [_al(STSZ) for _ in range(2)]
STX1 = [_al(STSZ) for _ in range(2)]
KVP = [_al(16*16*4*KB) for _ in range(2)]
W1F = _al(16*160*KB)
W2F = _al(8*20*5*KB)
W3F = _al(16*20*12*KB)
W4F = _al(8*48*5*KB)
CS1P = _al(20*16*8*64)
CS3P = _al(20*16*12*64)
DBG = _al(4096*KB)
WS_USED = _off[0]
WS_SIZE = 268435456
LSTRIDE = None
```

```python
from asmlib import *
from layout import *
import json, sys

A_BASE = 0; A_SLOT = 16*KB; A_NS = 3
B_BASE = 48*KB; B_SIZE = 104*KB
MISC = 152*KB
L_NM = MISC; L_RS = MISC + 512; L_CS1 = MISC + 1024; L_CS3 = MISC + 1536
L_KVT = MISC + 2560; L_KVZ = L_KVT + 2048
L_SYNC = MISC + 4864
LDS_TOTAL = 160*KB
LOG2E = 0x3fb8aa3b
FL_CL = FLAGS; FL_KV = FLAGS + 32*KB
SPIN_MAX = 300000

WS = "s[8:11]"; OUT = "s[12:15]"
S_W = 16; S_RB = 17; S_C = 18; S_L = 19
CFG = dict(mapping=1, stamp=False)

def stamp(a, tag):
    if not CFG["stamp"]: return
    if not hasattr(a, "st"): a.st = []
    i = len(a.st)
    assert i < 60, "too many stamps"
    a.st.append(tag)
    a(f"s_memrealtime s[98:99]")
    a(f"s_waitcnt lgkmcnt(0)")
    a(f"v_writelane_b32 v{a.streg}, s98, {i}")
    if hasattr(a, "lq"): a.lq.pend = []
def stamp_flush(a):
    if not CFG["stamp"]: return
    a(f"""s_lshl_b32 s96, s{S_L}, 8
    s_add_u32 s96, s96, s2
    s_lshl_b32 s96, s96, 3
    s_add_u32 s96, s96, s{S_W}
    s_lshl_b32 s96, s96, 8
    s_add_u32 s96, s96, {DBG}
    v_mbcnt_lo_u32_b32 v{a.sttmp}, -1, 0
    v_mbcnt_hi_u32_b32 v{a.sttmp}, -1, v{a.sttmp}
    v_lshlrev_b32 v{a.sttmp}, 2, v{a.sttmp}
    buffer_store_dword v{a.streg}, v{a.sttmp}, {WS}, s96 offen""")

class LQ:
    def __init__(self, a): self.a = a; self.pend = []; a.lq = self
    def ds(self, text, tag=None): self.a(text); self.pend.append(tag)
    def wait(self, tags):
        idx = -1
        for i, t in enumerate(self.pend):
            if t in tags: idx = i
        if idx < 0: return
        n = min(len(self.pend) - 1 - idx, 15)
        self.a(f"s_waitcnt lgkmcnt({n})")
        self.pend = self.pend[len(self.pend)-n:] if n else []
    def drain(self):
        if self.pend: self.a("s_waitcnt lgkmcnt(0)")
        self.pend = []

def lds_ref(bases, addr):
    for v, b in bases:
        if 0 <= addr - b < 65536: return v, addr - b
    raise Exception("lds addr out of reach %d" % addr)

def gemm(a, lq, stages, pools, fillers=None, first_zero=True, bar_frac=0.4, first_frac=None, rd_per=1):
    mf = []; reads = []; start = []
    for s, st in enumerate(stages):
        start.append(len(mf))
        seen = set()
        for m in st["mf"]:
            for k in (m[1], m[2]):
                if k in st["rd"] and k not in seen:
                    seen.add(k); reads.append((k, s, len(mf)))
            mf.append(m)
    last_use = {}
    for i, m in enumerate(mf):
        last_use[m[1]] = i; last_use[m[2]] = i
    barpos = {}
    for s in range(1, len(stages)):
        n = (start[s] - start[s-1])
        fr = bar_frac if (first_frac is None or s > len(first_frac)) else first_frac[s-1]
        barpos[start[s-1] + int(n*fr)] = s
    reg = {}; passed = [0]; rq = list(reads); inited = set()
    fillers = list(fillers or [])
    def try_issue():
        blocked = set()
        for i, (k, s, fu) in enumerate(rq):
            if s > passed[0]: break
            pool, v, imm = stages[s]["rd"][k]
            if pool in blocked: continue
            p = pools[pool]
            if isinstance(p, dict): r = p[k]
            elif p: r = p.pop(0)
            else:
                blocked.add(pool); continue
            reg[k] = r
            lq.ds(f"ds_read_b128 v[{r}:{r+3}], v{v} offset:{imm}", k)
            rq.pop(i); return True
        return False
    a("s_barrier")
    for _ in range(10):
        if not try_issue(): break
    for i, (c, x, y) in enumerate(mf):
        if i in barpos:
            s = barpos[i]
            while any(q[1] < s for q in rq):
                assert try_issue(), "not enough buffers before barrier"
            lq.wait({k for (k, s2, fu) in reads if s2 < s})
            a("s_barrier"); passed[0] = s
        for k in (x, y):
            while k not in reg:
                if k in pools.get("fixed", {}): reg[k] = pools["fixed"][k]; break
                assert try_issue(), f"cannot issue read for {k}"
        lq.wait({x, y})
        cs = f"v[{c}:{c+3}]"
        src = "0" if (first_zero and c not in inited) else cs
        inited.add(c)
        a(f"v_mfma_f32_16x16x32_bf16 {cs}, v[{reg[x]}:{reg[x]+3}], v[{reg[y]}:{reg[y]+3}], {src}")
        for k in (x, y):
            if last_use[k] == i:
                for st in stages:
                    if k in st["rd"]:
                        p = pools[st["rd"][k][0]]
                        if not isinstance(p, dict): p.append(reg[k])
        n = 0
        while n < rd_per and try_issue(): n += 1
        while fillers and fillers[0][0] <= i:
            fillers.pop(0)[1]()
    assert not rq and not fillers
    lq.drain()
    stamp(a, "gemm_end")

class Item:
    def __init__(self, kind, nkb, need, free, gbase, goffs):
        self.kind = kind; self.nkb = nkb; self.need = need; self.free = free
        self.gbase = gbase; self.goffs = goffs
        self.addr = None; self.avail = -1

class Plan:
    def __init__(self):
        self.items = []; self.nbar = 0
        self.bptr = 0; self.bfree = [-1]*(B_SIZE//KB); self.afree = [-1]*A_NS; self.acnt = 0
        self.pol = {}
        self.names = {}
    def phase_start(self, go):
        self.acnt = 0
        self.afree = [go]*A_NS
    def addA(self, it):
        s = self.acnt % A_NS; self.acnt += 1
        it.addr = A_BASE + s*A_SLOT; it.avail = self.afree[s]; self.afree[s] = it.free
        self.items.append(it); return it
    def addB(self, it):
        if self.bptr + it.nkb > B_SIZE//KB: self.bptr = 0
        it.addr = B_BASE + self.bptr*KB
        it.avail = max(self.bfree[self.bptr:self.bptr+it.nkb])
        for i in range(self.bptr, self.bptr+it.nkb): self.bfree[i] = it.free
        self.bptr += it.nkb
        self.items.append(it); return it

def emit_item(a, it, throttle=None):
    flags = "sc1" if it.kind == "A" else ""
    j = 0; n = 0
    while j < it.nkb:
        if throttle is not None: a(f"s_waitcnt vmcnt({throttle})")
        a(f"s_add_u32 m0, s30, {it.addr + j*KB}")
        a(f"s_add_u32 s31, s{it.gbase}, {it.goffs[j]}")
        a(f"buffer_load_dwordx4 v1, {WS}, s31 offen {flags} lds"); n += 1
        if j+2 < it.nkb and it.goffs[j+2] == it.goffs[j] + 2048:
            a(f"buffer_load_dwordx4 v1, {WS}, s31 offen offset:2048 {flags} lds"); n += 1
            j += 4
        else: j += 2
    return n

def layer_off(a, dst, arr):
    a(f"s_mul_i32 s{dst}, s{S_L}, {arr[1]-arr[0]}")
    a(f"s_add_u32 s{dst}, s{dst}, {arr[0]}")
def barriers(a, n, alt=False):
    for _ in range(n): a("s_barrier ; alt" if alt else "s_barrier")

def poll(a, vaddr, vtmp, starget, stmp):
    lab = a.label("poll")
    a(f"s_mov_b32 s{stmp}, {SPIN_MAX}")
    a("s_mov_b64 exec, 1")
    a(f"{lab}:")
    a(f"v_mov_b32 v{vtmp}, 0")
    a(f"buffer_atomic_add v{vtmp}, v{vaddr}, {WS}, 0 offen sc0 sc1")
    a(f"s_sub_u32 s{stmp}, s{stmp}, 1")
    a(f"s_cmp_eq_u32 s{stmp}, 0")
    a(f"s_cbranch_scc1 {lab}_x")
    a("s_waitcnt vmcnt(0)")
    a(f"v_cmp_gt_u32 vcc, s{starget}, v{vtmp}")
    a(f"s_cbranch_vccnz {lab}")
    a(f"{lab}_x:")
    a("s_mov_b64 exec, -1")

def signal(a, t):
    lab = a.label("sig")
    a(f"""
    s_lshl_b32 s22, s{S_RB}, 11
    s_add_u32 s22, s22, {FL_CL}
    v_lshl_add_u32 v{t}, v5, 7, s22
    v_mov_b32 v{t+1}, 1
    v_mov_b32 v{t+2}, {L_SYNC}
    s_mov_b64 exec, 1
    """)
    stamp(a, "stored")
    a("s_waitcnt vmcnt(0)")
    a(f"""
    ds_add_rtn_u32 v{t+3}, v{t+2}, v{t+1}
    s_waitcnt lgkmcnt(0)
    v_readfirstlane_b32 s22, v{t+3}
    s_and_b32 s22, s22, 3
    s_cmp_lg_u32 s22, 3
    s_cbranch_scc1 {lab}
    s_mov_b64 exec, 0xffff
    buffer_atomic_add v{t+1}, v{t}, {WS}, 0 offen sc1
    {lab}:
    s_mov_b64 exec, -1
    """)
    stamp(a, "signalled")

def misc_go(M, skip_first=False):
    lab = M.label("go")
    M(f"s_cmp_lg_u32 s{S_W}, 7\ns_cbranch_scc1 {lab}")
    if skip_first: M(f"s_cmp_eq_u32 s50, 0\ns_cbranch_scc1 {lab}")
    poll(M, 10, 11, 50, 24)
    M(f"{lab}:")
    M("s_add_u32 s50, s50, 16")
    M("s_barrier")
    stamp(M, "go")

def misc_stats(a, st_arr, nbar):
    lab = a.label("st")
    a(f"s_cmp_eq_u32 s{S_W}, 7\ns_cbranch_scc1 {lab}")
    layer_off(a, 20, st_arr)
    a(f"s_lshl_b32 s21, s{S_RB}, 13")
    a("s_add_u32 s20, s20, s21")
    a("s_add_u32 s21, s20, 4096")
    for cb in range(8):
        a(f"buffer_load_dwordx4 v[{16+4*cb}:{19+4*cb}], v1, {WS}, s{20 + cb//4} offen offset:{(cb%4)*1024} sc1")
    a(f"{lab}:")
    barriers(a, nbar)
    a(f"s_cmp_eq_u32 s{S_W}, 7\ns_cbranch_scc1 {lab}_e")
    a("s_waitcnt vmcnt(0)")
    for st in (4, 2, 1):
        for i in range(st):
            for h in range(4):
                a(f"v_add_f32 v{16+4*i+h}, v{16+4*i+h}, v{16+4*(i+st)+h}")
    a(f"""
    s_mov_b32 s22, 0x3acccccd            ; 1/640
    v_mul_f32 v16, s22, v16
    v_mul_f32 v18, s22, v18
    v_mul_f32 v20, v16, v16
    v_mul_f32 v21, v18, v18
    v_fma_f32 v20, v17, s22, -v20
    v_fma_f32 v21, v19, s22, -v21
    v_max_f32 v20, 0, v20
    v_max_f32 v21, 0, v21
    v_add_f32 v20, 0x3727c5ac, v20       ; +1e-5
    v_add_f32 v21, 0x3727c5ac, v21
    v_rsq_f32 v22, v20
    v_rsq_f32 v23, v21
    v_sub_f32 v24, 0, v16
    v_sub_f32 v25, 0, v18
    v_lshrrev_b32 v26, 1, v1
    v_add_u32 v26, {L_NM}, v26
    ds_write_b64 v26, v[24:25]
    ds_write_b64 v26, v[22:23] offset:512
    s_waitcnt lgkmcnt(0)
    {lab}_e:
    """)

def cs_issue(a, base, ntile, r0):
    a(f"s_mul_i32 s20, s{S_C}, {ntile*64}")
    a(f"s_add_u32 s20, s20, {base}")
    for kt in range(20):
        a(f"buffer_load_dwordx4 v[{r0+4*kt}:{r0+3+4*kt}], v1, {WS}, s20 offen")
        a(f"s_add_u32 s20, s20, {16*ntile*64}")
def cs_finish(a, ntile, r0, ldst):
    for kt in range(1, 20):
        for h in range(4): a(f"v_add_f32 v{r0+h}, v{r0+h}, v{r0+4*kt+h}")
    a(f"v_add_u32 v26, {ldst}, v1")
    a(f"v_cmp_gt_u32 vcc, {ntile*64}, v1")
    a("s_and_saveexec_b64 s[24:25], vcc")
    a(f"ds_write_b128 v26, v[{r0}:{r0+3}]")
    a("s_mov_b64 exec, -1")

BB2 = [(3, B_BASE), (4, B_BASE+65536)]
def p3(plan, C, M):
    go = plan.nbar; b0 = go + 1
    plan.phase_start(go)
    A = []; B = []
    for s in range(10):
        A.append(plan.addA(Item("A", 16, b0+s, b0+s+1, 42, [(s*16+j)*KB for j in range(16)])))
        B.append(plan.addB(Item("B", 24, b0+s, b0+s+1, 46, [(s*24+j)*KB for j in range(24)])))
    plan.nbar += 11
    plan.names[go] = "p3go"
    plan.pol[go] = CFG.get("p3go", (0, 96, 10))
    for s in range(10): plan.pol[b0+s] = (32, 0 if s == 0 else 48, None)
    misc_go(M)
    misc_stats(M, STX1, 3)
    barriers(M, 7)
    a = C; lq = LQ(a)
    ACC = 16; BB = 112; AB = 160; T = 224
    a(f"""
    s_lshr_b32 s20, s{S_W}, 1           ; mh
    s_and_b32 s21, s{S_W}, 1            ; nh
    s_lshl_b32 s22, s20, 12
    v_add_u32 v2, s22, v1               ; A base
    s_mul_i32 s22, s21, {6*KB}
    s_add_u32 s22, s22, {B_BASE}
    v_add_u32 v3, s22, v1               ; B base 0
    v_add_u32 v4, 0x10000, v3           ; B base 1
    s_lshl_b32 s22, s20, 8
    s_add_u32 s22, s22, {L_NM}
    v_lshl_add_u32 v7, v5, 2, s22
    s_mul_i32 s22, s21, {6*64}
    s_add_u32 s22, s22, {L_CS3}
    v_lshl_add_u32 v8, v6, 4, s22
    s_mul_i32 s22, s{S_C}, 12
    s_mul_i32 s23, s21, 6
    s_add_u32 s22, s22, s23
    v_add_u32 v9, s22, v6
    v_lshrrev_b32 v10, 1, v6
    v_add3_u32 v10, v10, s22, 4
    v_lshrrev_b32 v11, 2, v9
    v_and_b32 v9, 3, v9
    v_lshlrev_b32 v9, 8, v9
    v_lshl_add_u32 v9, v11, 13, v9
    v_lshl_add_u32 v9, v5, 4, v9
    v_lshrrev_b32 v11, 2, v10
    v_and_b32 v10, 3, v10
    v_lshlrev_b32 v10, 8, v10
    v_lshl_add_u32 v10, v11, 13, v10
    v_lshl_add_u32 v10, v5, 4, v10
    v_and_b32 v11, 1, v6
    v_lshl_add_u32 v10, v11, 3, v10
    """)
    layer_off(a, 24, HF)
    a(f"s_mul_i32 s25, s{S_RB}, {48*8*KB}\ns_add_u32 s24, s24, s25\ns_lshl_b32 s25, s20, 12\ns_add_u32 s24, s24, s25")
    a("s_barrier")
    stages = []
    for s in range(10):
        rd = {}; mf = []
        for k in range(2):
            for m in range(4): rd[("A", s, k, m)] = ("A", 2, A[s].addr + (k*8+m)*KB)
            for t in range(6): rd[("B", s, k, t)] = ("B",) + lds_ref(BB2, B[s].addr + (k*12+t)*KB)
        for t in range(6):
            for m in range(4):
                for k in range(2): mf.append((ACC + (m*6+t)*4, ("B", s, k, t), ("A", s, k, m)))
        stages.append(dict(mf=mf, rd=rd))
    pools = {"A": [AB+4*i for i in range(16)], "B": [BB+4*i for i in range(12)]}
    fl = []
    base = 48*5
    def ld_stats():
        for m in range(4): lq.ds(f"ds_read_b32 v{T+m}, v7 offset:{64*m}", ("nm", m))
        for m in range(4): lq.ds(f"ds_read_b32 v{T+4+m}, v7 offset:{512+64*m}", ("rs", m))
    fl.append((base - 20, ld_stats))
    for t in range(6):
        fl.append((base - 14 + 2*t, lambda t=t: lq.ds(f"ds_read_b128 v[{T+8+4*t}:{T+11+4*t}], v8 offset:{64*t}", ("cs", t))))
    for t in range(6):
        for m in range(4):
            for hh in range(2):
                def f(t=t, m=m, hh=hh):
                    lq.wait({("nm", m), ("cs", t), ("rs", 3)})
                    c = ACC + (m*6+t)*4
                    for j in (2*hh, 2*hh+1): a(f"v_fmac_f32 v{c+j}, v{T+8+4*t+j}, v{T+m}")
                fl.append((base + (t*4+m)*2 + 20 + hh, f))
    gemm(a, lq, stages, pools, fl, first_frac=CFG.get("p3ff", [0.5]))
    a(f"s_mov_b32 s20, {LOG2E}")
    X = BB
    for m in range(4):
        a(f"v_mul_f32 v{T+8+2*m}, s20, v{T+4+m}")
        a(f"v_sub_f32 v{T+8+2*m}, 0, v{T+8+2*m}")
        a(f"v_mul_f32 v{T+16+2*m}, v{T+4+m}, v{T+4+m}")
    for m in range(4):
        c1 = T+8+2*m; c2 = T+16+2*m
        o = X + 40 + 8*(m % 2)
        for p in range(3):
            G = ACC + (m*6+2*p)*4; U = G + 4; t = X + 12*p
            for h in range(2): a(f"v_pk_mul_f32 v[{t+2*h}:{t+2*h+1}], v[{G+2*h}:{G+2*h+1}], v[{c1}:{c1+1}] op_sel_hi:[1,0]")
            for h in range(2): a(f"v_pk_mul_f32 v[{t+4+2*h}:{t+5+2*h}], v[{G+2*h}:{G+2*h+1}], v[{U+2*h}:{U+2*h+1}]")
        for p in range(3):
            t = X + 12*p
            for j in range(4): a(f"v_exp_f32 v{t+j}, v{t+j}")
            for h in range(2): a(f"v_pk_mul_f32 v[{t+4+2*h}:{t+5+2*h}], v[{t+4+2*h}:{t+5+2*h}], v[{c2}:{c2+1}] op_sel_hi:[1,0]")
        for p in range(3):
            t = X + 12*p
            for h in range(2): a(f"v_pk_add_f32 v[{t+2*h}:{t+2*h+1}], v[{t+2*h}:{t+2*h+1}], 1.0 op_sel_hi:[1,0]")
        for p in range(3):
            t = X + 12*p
            for j in range(4): a(f"v_rcp_f32 v{t+j}, v{t+j}")
        for p in range(3):
            t = X + 12*p
            for h in range(2): a(f"v_pk_mul_f32 v[{t+2*h}:{t+2*h+1}], v[{t+2*h}:{t+2*h+1}], v[{t+4+2*h}:{t+5+2*h}]")
        for p in range(3):
            t = X + 12*p
            for h in range(2): a(f"v_cvt_pk_bf16_f32 v{o+2*p+h}, v{t+2*h}, v{t+2*h+1}")
        a(f"buffer_store_dwordx4 v[{o}:{o+3}], v9, {WS}, s24 offen offset:{m*1024} sc1")
        a(f"buffer_store_dwordx2 v[{o+4}:{o+5}], v10, {WS}, s24 offen offset:{m*1024} sc1")
    signal(a, 16)

def p24(plan, C, M, which, endlab=None):
    KT = 20 if which == 2 else 48
    nst = KT // 4
    go = plan.nbar; b0 = go + 1
    plan.phase_start(go)
    A = []; B = []
    ga, gb = (41, 45) if which == 2 else (43, 47)
    for s in range(nst):
        A.append(plan.addA(Item("A", 16, b0+s, b0+s+1, ga, [((s*4 + j//4)*8 + j % 4)*KB for j in range(16)])))
        B.append(plan.addB(Item("B", 20, b0+s, b0+s+1, gb, [(s*20+j)*KB for j in range(20)])))
    plan.nbar += nst + 2
    plan.names[go] = f"p{which}go"
    plan.pol[go] = CFG.get(f"p{which}go", (0, 100, 10))
    for s in range(nst): plan.pol[b0+s] = (40, 0, None)
    plan.pol[b0+nst] = (0, 24, None)
    misc_go(M)
    barriers(M, nst+1)
    a = C; lq = LQ(a)
    ACC = 16; BB = 56; AB = 96; R = 128; T = 140
    x0, x1 = A[nst-2].addr, A[nst-3].addr
    a(f"""
    s_lshr_b32 s20, s{S_W}, 1           ; mh
    s_and_b32 s21, s{S_W}, 1            ; kh
    s_lshl_b32 s22, s20, 11
    s_mul_i32 s23, s21, {5*KB}
    s_add_u32 s22, s22, s23
    v_add_u32 v2, s22, v1
    v_xor_b32 v138, 1024, v2
    s_add_u32 s22, s23, {B_BASE}
    v_add_u32 v3, s22, v1
    v_add_u32 v4, 0x10000, v3
    s_lshr_b32 s26, s{S_C}, 1           ; cb
    s_and_b32 s27, s{S_C}, 1            ; hf
    s_lshl_b32 s27, s27, 2
    s_add_u32 s27, s27, s{S_W}
    s_mul_i32 s22, s26, 10
    v_add_u32 v7, s22, v6
    v_add_u32 v8, 4, v7                 ; pair23
    v_lshrrev_b32 v9, 1, v6
    v_add3_u32 v9, v9, s22, 8           ; single
    v_and_b32 v13, 1, v6
    v_lshlrev_b32 v13, 3, v13
    """)
    for i in range(3):
        a(f"""v_lshrrev_b32 v14, 2, v{7+i}
        v_and_b32 v{10+i}, 3, v{7+i}
        v_lshlrev_b32 v{10+i}, 8, v{10+i}
        v_lshl_add_u32 v{10+i}, v14, 13, v{10+i}
        v_lshl_add_u32 v{10+i}, v5, 4, v{10+i}""")
    a("v_add_u32 v12, v12, v13")
    res = XF if which == 2 else X1F
    layer_off(a, 24, res)
    a(f"s_mul_i32 s25, s{S_RB}, {160*KB}\ns_lshl_b32 s28, s27, 10\ns_add_u32 s25, s25, s28\ns_add_u32 s24, s24, s25")
    a(f"buffer_load_dwordx4 v[{R}:{R+3}], v10, {WS}, s24 offen sc1")
    a(f"buffer_load_dwordx4 v[{R+4}:{R+7}], v11, {WS}, s24 offen sc1")
    a(f"buffer_load_dwordx2 v[{R+8}:{R+9}], v12, {WS}, s24 offen sc1")
    if which == 2:
        layer_off(a, 24, X1F); a("s_add_u32 s24, s24, s25")
        layer_off(a, 28, STX1)
    else:
        a(f"s_add_u32 s24, s25, {XF[1]}")
        a(f"s_mov_b32 s28, {STX[1]}")
        a(f"""v_mul_u32_u24 v14, 1280, v5
        v_lshl_add_u32 v7, v7, 4, v14
        v_lshl_add_u32 v8, v8, 4, v14
        v_lshl_add_u32 v9, v9, 4, v14
        v_add_u32 v9, v9, v13
        s_lshl_b32 s35, s{S_RB}, 3
        s_add_u32 s35, s35, s27
        s_mul_i32 s35, s35, {16*1280}""")
    a(f"""s_lshl_b32 s29, s{S_RB}, 3
    s_add_u32 s29, s29, s26
    s_lshl_b32 s29, s29, 10
    s_add_u32 s28, s28, s29
    s_lshl_b32 s29, s27, 7
    s_add_u32 s28, s28, s29
    v_lshlrev_b32 v13, 3, v5
    s_cmp_eq_u32 s20, 0
    s_mov_b32 s22, {x1}
    s_cselect_b32 s22, {x0}, s22
    s_add_u32 s29, s22, s23
    v_add_u32 v14, s29, v1
    s_sub_u32 s29, s22, s23
    s_add_u32 s29, s29, {5*KB}
    v_add_u32 v15, s29, v1
    """)
    a("s_barrier")
    stages = []
    for s in range(nst):
        rd = {}; mf = []
        for k in range(2):
            for m in range(2): rd[("A", s, k, m)] = ("A", (2, 138)[m], A[s].addr + (k*8)*KB)
            for t in range(5): rd[("B", s, k, t)] = ("B",) + lds_ref(BB2, B[s].addr + (k*10+t)*KB)
        if s < nst-1:
            for t in range(5):
                for m in range(2):
                    for k in range(2): mf.append((ACC + (m*5+t)*4, ("B", s, k, t), ("A", s, k, m)))
        else:
            for m in (1, 0):
                for t in range(5):
                    for k in range(2): mf.append((ACC + (m*5+t)*4, ("B", s, k, t), ("A", s, k, m)))
        stages.append(dict(mf=mf, rd=rd))
    pools = {"A": [AB+4*i for i in range(8)], "B": [BB+4*i for i in range(10)]}
    nm = nst*20
    fl = []
    for t in range(5):
        fl.append((min(nm-1, nm-10 + 2*t + 1), lambda t=t: lq.ds(f"ds_write_b128 v14, v[{ACC+20+4*t}:{ACC+20+4*t+3}] offset:{t*KB}", ("xw", t))))
    gemm(a, lq, stages, pools, fl, bar_frac=0.6)
    a("s_barrier")
    for t in range(5): a(f"ds_read_b128 v[{BB+4*t}:{BB+4*t+3}], v15 offset:{t*KB}")
    a("s_waitcnt vmcnt(0)")
    for i in range(10):
        a(f"v_lshlrev_b32 v{T+2*(i%2)}, 16, v{R+i}")
        a(f"v_and_b32 v{T+1+2*(i%2)}, 0xffff0000, v{R+i}")
        a(f"v_pk_add_f32 v[{ACC+2*i}:{ACC+2*i+1}], v[{ACC+2*i}:{ACC+2*i+1}], v[{T+2*(i%2)}:{T+1+2*(i%2)}]")
    a("s_waitcnt lgkmcnt(0)")
    for i in range(10):
        a(f"v_pk_add_f32 v[{ACC+2*i}:{ACC+2*i+1}], v[{ACC+2*i}:{ACC+2*i+1}], v[{BB+2*i}:{BB+2*i+1}]")
    for i in range(10): a(f"v_cvt_pk_bf16_f32 v{R+i}, v{ACC+2*i}, v{ACC+2*i+1}")
    lab = a.label("x24")
    if which == 4:
        a(f"s_cmp_eq_u32 s{S_L}, 0\ns_cbranch_scc1 {lab}_ws")
        a(f"buffer_store_dwordx4 v[{R}:{R+3}], v7, {OUT}, s35 offen sc1")
        a(f"buffer_store_dwordx4 v[{R+4}:{R+7}], v8, {OUT}, s35 offen sc1")
        a(f"buffer_store_dwordx2 v[{R+8}:{R+9}], v9, {OUT}, s35 offen sc1")
        a(f"s_branch {endlab}\n{lab}_ws:")
    a(f"buffer_store_dwordx4 v[{R}:{R+3}], v10, {WS}, s24 offen sc1")
    a(f"buffer_store_dwordx4 v[{R+4}:{R+7}], v11, {WS}, s24 offen sc1")
    a(f"buffer_store_dwordx2 v[{R+8}:{R+9}], v12, {WS}, s24 offen sc1")
    for i in range(10):
        a(f"v_lshlrev_b32 v{ACC+2*i}, 16, v{R+i}")
        a(f"v_and_b32 v{ACC+2*i+1}, 0xffff0000, v{R+i}")
    a(f"v_pk_mul_f32 v[{T+2}:{T+3}], v[{ACC}:{ACC+1}], v[{ACC}:{ACC+1}]")
    for i in range(1, 10):
        a(f"v_pk_fma_f32 v[{T+2}:{T+3}], v[{ACC+2*i}:{ACC+2*i+1}], v[{ACC+2*i}:{ACC+2*i+1}], v[{T+2}:{T+3}]")
        a(f"v_pk_add_f32 v[{ACC}:{ACC+1}], v[{ACC}:{ACC+1}], v[{ACC+2*i}:{ACC+2*i+1}]")
    a(f"v_add_f32 v{T}, v{ACC}, v{ACC+1}")
    a(f"v_add_f32 v{T+1}, v{T+2}, v{T+3}")
    for op in ("v_permlane32_swap_b32", "v_permlane16_swap_b32"):
        a(f"""v_mov_b32 v{T+2}, v{T}
        v_mov_b32 v{T+3}, v{T+1}
        {op} v{T+2}, v{T}
        {op} v{T+3}, v{T+1}
        v_pk_add_f32 v[{T}:{T+1}], v[{T}:{T+1}], v[{T+2}:{T+3}]""")
    a(f"""s_mov_b64 exec, 0xffff
    buffer_store_dwordx2 v[{T}:{T+1}], v13, {WS}, s28 offen sc1
    s_mov_b64 exec, -1""")
    signal(a, 16)

def p1(plan, C, M):
    go = plan.nbar; b0 = go + 1
    plan.phase_start(go)
    A = []; B = []; B2 = []
    for s in range(10):
        A.append(plan.addA(Item("A", 16, b0+s, b0+s+1, 40, [(s*16+j)*KB for j in range(16)])))
        B.append(plan.addB(Item("B", 10, b0+s, b0+s+1, 44, [(s*10+j)*KB for j in range(10)])))
    for s in range(5):
        B2.append(plan.addB(Item("B", 12, b0+10, b0+11, 44, [(100+s*12+j)*KB for j in range(12)])))
    plan.nbar += 13
    plan.names[go] = "p1go"
    plan.pol[go] = (0, 0, None)
    for s in range(11): plan.pol[b0+s] = (40, 0, None)
    plan.pol[b0+10] = (0, 0, None)
    plan.pol[b0+11] = (0, 40, 10)
    PART = A[8].addr
    misc_go(M, True)
    misc_stats(M, STX, 3)
    lab = M.label("cs")
    M(f"s_cmp_lg_u32 s{S_L}, 0\ns_cbranch_scc1 {lab}\ns_cmp_lg_u32 s{S_W}, 7\ns_cbranch_scc1 {lab}")
    M("s_waitcnt vmcnt(0)")
    cs_finish(M, 8, 32, L_CS1)
    cs_finish(M, 12, 112, L_CS3)
    M("s_waitcnt lgkmcnt(0)")
    M(f"{lab}:")
    layer_off(M, 20, KVP)
    M(f"""
    s_sub_u32 s26, s{S_W}, 6
    s_lshl_b32 s27, s26, 15
    s_add_u32 s27, s27, {FL_KV}
    s_lshl_b32 s26, s26, 11             ; mw*2K
    s_lshl_b32 s21, s{S_C}, 16
    s_add_u32 s20, s20, s21
    s_add_u32 s20, s20, s26
    s_lshl_b32 s21, s{S_RB}, 12
    s_add_u32 s21, s21, s20
    v_add_u32 v2, s26, v1
    s_lshl_b32 s22, s{S_C}, 11
    s_add_u32 s22, s22, s27
    v_lshlrev_b32 v3, 3, v1
    v_add_u32 v3, s22, v3
    s_lshl_b32 s23, s{S_RB}, 7
    s_add_u32 s22, s22, s23
    v_mov_b32 v7, s22
    v_mov_b32 v4, 1
    s_lshr_b32 s27, s26, 1
    v_lshrrev_b32 v5, 1, v1
    v_add_u32 v5, s27, v5
    v_add_u32 v5, {L_KVT}, v5
    s_lshl_b32 s51, s{S_L}, 4
    s_add_u32 s51, s51, 16
    """)
    barriers(M, 8)
    for w in range(4):
        for t in range(2): M(f"ds_read_b128 v[{16+8*w+4*t}:{19+8*w+4*t}], v2 offset:{PART+w*4096+t*1024}")
    M("s_waitcnt lgkmcnt(0)")
    for (x, y) in ((0, 1), (2, 3), (0, 2)):
        for h in range(8): M(f"v_add_f32 v{16+8*x+h}, v{16+8*x+h}, v{16+8*y+h}")
    M(f"buffer_store_dwordx4 v[16:19], v1, {WS}, s21 offen sc1")
    M(f"buffer_store_dwordx4 v[20:23], v1, {WS}, s21 offen offset:1024 sc1")
    stamp(M, "kv_stored")
    M("s_mov_b64 exec, 0xffff")
    M("s_waitcnt vmcnt(0)")
    M(f"buffer_atomic_add v4, v3, {WS}, 0 offen sc1")
    stamp(M, "kv_sig")
    poll(M, 7, 6, 51, 24)
    stamp(M, "polled")
    for r in range(16):
        M(f"buffer_load_dwordx4 v[{16+8*r}:{19+8*r}], v1, {WS}, s20 offen sc1")
        M(f"buffer_load_dwordx4 v[{20+8*r}:{23+8*r}], v1, {WS}, s20 offen offset:1024 sc1")
        M("s_add_u32 s20, s20, 4096")
    for r in range(1, 16):
        M(f"s_waitcnt vmcnt({30-2*r})")
        for h in range(8): M(f"v_add_f32 v{16+h}, v{16+h}, v{16+8*r+h}")
    for h in range(4): M(f"v_cvt_pk_bf16_f32 v{24+h}, v{16+2*h}, v{17+2*h}")
    M("ds_write_b64 v5, v[24:25]")
    M("ds_write_b64 v5, v[26:27] offset:512")
    M("s_waitcnt lgkmcnt(0)")
    stamp(M, "summed")
    M("s_barrier")
    a = C; lq = LQ(a)
    ACC = 16; BB = 56; AR = 96
    a(f"""
    s_lshl_b32 s22, s{S_W}, 11
    v_add_u32 v2, s22, v1               ; A base
    v_add_u32 v3, {B_BASE}, v1
    v_add_u32 v4, 0x10000, v3
    s_lshl_b32 s22, s{S_W}, 7
    s_add_u32 s22, s22, {L_NM}
    v_lshl_add_u32 v7, v6, 4, s22
    v_lshl_add_u32 v8, v5, 2, s22
    v_lshlrev_b32 v9, 2, v5
    v_add_u32 v9, {L_CS1}, v9
    v_lshlrev_b32 v10, 4, v6
    v_add_u32 v10, {L_CS1}, v10
    s_lshl_b32 s22, s{S_W}, 12
    s_add_u32 s22, s22, {PART}
    v_add_u32 v11, s22, v1
    v_cmp_gt_u32 s[36:37], 8, v5        ; n<8
    v_cmp_eq_u32 s[38:39], 1, v5
    v_cmp_le_u32 s[40:41], 12, v5
    s_or_b64 s[38:39], s[38:39], s[40:41]
    v_cmp_eq_u32 s[40:41], 1, v6        ; g==1
    s_barrier
    """)
    stages = []; fixedA = {}
    for s in range(10):
        rd = {}; mf = []
        for k in range(2):
            for m in range(2):
                rd[("A", 2*s+k, m)] = ("A", 2, A[s].addr + (k*8+m)*KB)
                fixedA[("A", 2*s+k, m)] = AR + ((2*s+k)*2+m)*4
            for t in range(5): rd[("B", s, k, t)] = ("B",) + lds_ref(BB2, B[s].addr + (k*5+t)*KB)
        for t in range(5):
            for m in range(2):
                for k in range(2): mf.append((ACC + (m*5+t)*4, ("A", 2*s+k, m), ("B", s, k, t)))
        stages.append(dict(mf=mf, rd=rd))
    pools = {"A": fixedA, "B": [BB+4*i for i in range(10)]}
    gemm(a, lq, stages, pools, None, bar_frac=0.6)
    NMr = BB; RSr = BB+8; RLr = BB+16; CSr = BB+24; T = BB+30
    for m in range(2):
        a(f"ds_read_b128 v[{NMr+4*m}:{NMr+4*m+3}], v7 offset:{64*m}")
        a(f"ds_read_b128 v[{RSr+4*m}:{RSr+4*m+3}], v7 offset:{512+64*m}")
    for t in range(5): a(f"ds_read_b32 v{CSr+t}, v9 offset:{64*t}")
    a(f"s_mov_b32 s20, {LOG2E}\ns_mov_b32 s21, 0x358637bd      ; 1e-6")
    a("s_waitcnt lgkmcnt(0)")
    for i in range(8): a(f"v_mul_f32 v{RLr+i}, s20, v{RSr+i}")
    for t in range(5):
        for m in range(2):
            c = ACC + (m*5+t)*4
            for j in range(4): a(f"v_fmac_f32 v{c+j}, v{NMr+4*m+j}, v{CSr+t}")
    def phi4(c, rs, rl, dst):
        for h in range(2): a(f"v_pk_mul_f32 v[{T+2*h}:{T+2*h+1}], v[{c+2*h}:{c+2*h+1}], {rl(h)}")
        for j in range(4): a(f"v_fma_f32 v{dst+j}, v{c+j}, {rs(j)}, s21")
        for j in range(4): a(f"v_exp_f32 v{T+j}, v{T+j} clamp")
        for j in range(4): a(f"v_max_f32 v{dst+j}, s21, v{dst+j}")
        for h in range(2): a(f"v_pk_add_f32 v[{dst+2*h}:{dst+2*h+1}], v[{dst+2*h}:{dst+2*h+1}], v[{T+2*h}:{T+2*h+1}]")
    for t in (0, 1):
        for m in range(2):
            c = ACC + (m*5+t)*4
            phi4(c, lambda j: f"v{RSr+4*m+j}", lambda h: f"v[{RLr+4*m+2*h}:{RLr+4*m+2*h+1}]", c)
            for h in range(2): a(f"v_cvt_pk_bf16_f32 v{ACC+4*t+2*m+h}, v{c+2*h}, v{c+2*h+1}")
    for t in (2, 3):
        for m in range(2):
            c = ACC + (m*5+t)*4
            for h in range(2): a(f"v_pk_mul_f32 v[{c+2*h}:{c+2*h+1}], v[{c+2*h}:{c+2*h+1}], v[{RSr+4*m+2*h}:{RSr+4*m+2*h+1}]")
            for h in range(2): a(f"v_cvt_pk_bf16_f32 v{ACC+4*t+2*m+h}, v{c+2*h}, v{c+2*h+1}")
    a(f"v_mov_b32 v{T+8}, 0x3f803f80")
    for m in range(2):
        c = ACC + (m*5+4)*4
        phi4(c, lambda j: f"v{RSr+4*m+j}", lambda h: f"v[{RLr+4*m+2*h}:{RLr+4*m+2*h+1}]", T+4)
        for h in range(2): a(f"v_pk_mul_f32 v[{c+2*h}:{c+2*h+1}], v[{c+2*h}:{c+2*h+1}], v[{RSr+4*m+2*h}:{RSr+4*m+2*h+1}]")
        for h in range(2): a(f"v_cvt_pk_bf16_f32 v{ACC+20+2*m+h}, v{c+2*h}, v{c+2*h+1}")
        for h in range(2): a(f"v_cvt_pk_bf16_f32 v{ACC+16+2*m+h}, v{T+4+2*h}, v{T+5+2*h}")
        for h in range(2): a(f"v_cndmask_b32 v{ACC+20+2*m+h}, v{ACC+20+2*m+h}, v{T+8}, s[36:37]")
    PK0, PK1, V0, V1, MA, MB = (ACC+4*i for i in range(6))
    Dr = BB
    prs = [(PK0, V0), (PK1, V1), (MA, V0), (MA, V1), (PK0, MB), (PK1, MB), (MA, MB)]
    for i, (x, y) in enumerate(prs):
        a(f"v_mfma_f32_16x16x32_bf16 v[{Dr+4*i}:{Dr+4*i+3}], v[{x}:{x+3}], v[{y}:{y+3}], 0")
    Q = ACC + 24
    for m in range(2):
        a(f"ds_read_b32 v{Q+m}, v8 offset:{64*m}")
        a(f"ds_read_b32 v{12+2*m}, v8 offset:{512+64*m}")
    for t in range(3): a(f"ds_read_b128 v[{Q+4+4*t}:{Q+7+4*t}], v10 offset:{64*(5+t)}")
    a(f"ds_write_b128 v11, v[{Dr}:{Dr+3}]")
    a(f"ds_write_b128 v11, v[{Dr+4}:{Dr+7}] offset:1024")
    for j in range(4): a(f"v_cndmask_b32 v{Dr+8+j}, v{Dr+8+j}, v{Dr+12+j}, s[40:41]")
    for j in range(4): a(f"v_cndmask_b32 v{Dr+16+j}, v{Dr+16+j}, v{Dr+20+j}, s[38:39]")
    a(f"ds_write_b128 v11, v[{Dr+16}:{Dr+19}] offset:3072")
    a("s_mov_b32 exec_hi, 0")
    a(f"ds_write_b128 v11, v[{Dr+8}:{Dr+11}] offset:2048")
    a(f"ds_write_b128 v11, v[{Dr+24}:{Dr+27}] offset:2560")
    a("s_mov_b32 exec_hi, -1")
    a("s_waitcnt lgkmcnt(5)")
    for m in range(2):
        for t in range(3):
            c = ACC + (m*3+t)*4
            for j in range(4): a(f"v_mul_f32 v{c+j}, v{Q+m}, v{Q+4+4*t+j}")
    a("s_waitcnt lgkmcnt(0)")
    stamp(a, "epi1_end")
    rd = {}; mf = []
    for s in range(5):
        for k in range(4):
            for t in range(3): rd[("B2", s, k, t)] = ("B",) + lds_ref(BB2, B2[s].addr + (k*3+t)*KB)
        for t in range(3):
            for m in range(2):
                for k in range(4): mf.append((ACC + (m*3+t)*4, ("B2", s, k, t), ("A", 4*s+k, m)))
    pools = {"fixed": fixedA, "B": [BB+4*i for i in range(10)] + [ACC+24+4*i for i in range(4)]}
    gemm(a, lq, [dict(mf=mf, rd=rd)], pools, None, first_zero=False)
    XR = AR
    for m in range(2): a(f"v_mul_f32 v{13+2*m}, s20, v{12+2*m}")
    for m in range(2):
        for t in range(3):
            c = ACC + (m*3+t)*4
            phi4(c, lambda j: f"v{12+2*m}", lambda h: f"v[{12+2*m}:{13+2*m}] op_sel:[0,1] op_sel_hi:[1,1]", c)
            o = XR + 8*m + (0, 4, 2)[t]
            for h in range(2): a(f"v_cvt_pk_bf16_f32 v{o+h}, v{c+2*h}, v{c+2*h+1}")
    G = AR + 16
    a(f"""
    v_lshrrev_b32 v{G}, 1, v1
    v_add_u32 v{G}, {L_KVT}, v{G}
    v_mov_b32 v{G+1}, {L_KVZ}
    v_add_u32 v{G+2}, 1024, v{G}
    v_cmp_eq_u32 s[42:43], 0, v6
    v_cndmask_b32 v{G+3}, v{G+1}, v{G+2}, s[42:43]
    v_cndmask_b32 v{G+4}, v{G+1}, v{G+2}, s[40:41]
    v_and_b32 v{G+5}, 1, v5
    v_lshrrev_b32 v{G+6}, 2, v5
    v_lshl_add_u32 v{G+6}, v{G+5}, 2, v{G+6}
    v_add_u32 v{G+6}, 8, v{G+6}
    v_and_b32 v{G+7}, 2, v5
    v_cmp_ne_u32 vcc, 0, v{G+7}
    v_cndmask_b32 v{G+6}, v{G+6}, v{G+5}, vcc
    v_lshl_add_u32 v{G+6}, v6, 4, v{G+6}
    v_lshlrev_b32 v{G+6}, 3, v{G+6}
    v_add_u32 v{G+7}, {L_KVT+1536}, v{G+6}
    v_add_u32 v{G+8}, {L_KVT+1024+256}, v{G+6}
    v_cmp_eq_u32 s[44:45], 0, v{G+5}
    s_and_b64 s[46:47], s[44:45], s[42:43]
    s_andn2_b64 s[48:49], s[40:41], s[44:45]
    v_cndmask_b32 v{G+9}, v{G+1}, v{G+7}, s[44:45]
    v_cndmask_b32 v{G+10}, v{G+1}, v{G+8}, s[46:47]
    v_cndmask_b32 v{G+11}, v{G+7}, v{G+1}, s[44:45]
    v_cndmask_b32 v{G+12}, v{G+1}, v{G+8}, s[48:49]
    s_mul_i32 s22, s{S_C}, 5
    v_add_u32 v{G+13}, s22, v6
    v_lshrrev_b32 v{G+14}, 2, v{G+13}
    v_and_b32 v{G+13}, 3, v{G+13}
    v_lshlrev_b32 v{G+13}, 8, v{G+13}
    v_lshl_add_u32 v{G+13}, v{G+14}, 13, v{G+13}
    v_lshl_add_u32 v{G+13}, v5, 4, v{G+13}
    s_add_u32 s22, s22, 4
    s_lshr_b32 s23, s22, 2
    s_lshl_b32 s23, s23, 13
    s_and_b32 s22, s22, 3
    s_lshl_b32 s22, s22, 8
    s_add_u32 s22, s22, s23
    v_lshlrev_b32 v{G+14}, 4, v5
    v_lshl_add_u32 v{G+14}, v6, 2, v{G+14}
    v_add_u32 v{G+14}, s22, v{G+14}
    """)
    layer_off(a, 24, OF)
    a(f"s_mul_i32 s25, s{S_RB}, {160*KB}\ns_add_u32 s24, s24, s25\ns_lshl_b32 s25, s{S_W}, 11\ns_add_u32 s24, s24, s25")
    stamp(a, "qepi_end")
    a("s_barrier")
    stamp(a, "kv_ready")
    K = BB
    a(f"""
    ds_read_b64 v[{K+8}:{K+9}], v{G+9}
    ds_read_b64 v[{K+10}:{K+11}], v{G+10}
    ds_read_b64 v[{K+12}:{K+13}], v{G+12}
    ds_read_b64 v[{K+14}:{K+15}], v{G+11}
    ds_read_b64 v[{K}:{K+1}], v{G}
    ds_read_b64 v[{K+2}:{K+3}], v{G+3}
    ds_read_b64 v[{K+4}:{K+5}], v{G+4}
    ds_read_b64 v[{K+6}:{K+7}], v{G} offset:512
    s_waitcnt lgkmcnt(4)
    """)
    for m in range(2):
        x = XR + 8*m; d = ACC + 12*m
        a(f"v_mfma_f32_16x16x32_bf16 v[{d+8}:{d+11}], v[{K+8}:{K+11}], v[{x}:{x+3}], 0")
        a(f"v_mfma_f32_16x16x32_bf16 v[{d+8}:{d+11}], v[{K+12}:{K+15}], v[{x+2}:{x+5}], v[{d+8}:{d+11}]")
    a("s_waitcnt lgkmcnt(0)")
    for m in range(2):
        x = XR + 8*m; d = ACC + 12*m
        a(f"v_mfma_f32_16x16x32_bf16 v[{d}:{d+3}], v[{K}:{K+3}], v[{x}:{x+3}], 0")
        a(f"v_mfma_f32_16x16x32_bf16 v[{d+4}:{d+7}], v[{K+4}:{K+7}], v[{x+2}:{x+5}], 0")
    for m in range(2):
        d = ACC + 12*m
        a(f"v_add_f32 v{d+10}, s21, v{d+10}\nv_add_f32 v{d+11}, s21, v{d+11}")
        a(f"v_rcp_f32 v{d+10}, v{d+10}\nv_rcp_f32 v{d+11}, v{d+11}")
    for m in range(2):
        d = ACC + 12*m; o = K + 16 + 8*m
        for h in range(2): a(f"v_pk_mul_f32 v[{d+2*h}:{d+2*h+1}], v[{d+2*h}:{d+2*h+1}], v[{d+10}:{d+11}] op_sel_hi:[1,0]")
        for h in range(2): a(f"v_pk_mul_f32 v[{d+4+2*h}:{d+5+2*h}], v[{d+4+2*h}:{d+5+2*h}], v[{d+10}:{d+11}] op_sel:[0,1] op_sel_hi:[1,1]")
        a(f"v_pk_mul_f32 v[{d+8}:{d+9}], v[{d+8}:{d+9}], v[{d+10}:{d+11}]")
        for h in range(5): a(f"v_cvt_pk_bf16_f32 v{o+h}, v{d+2*h}, v{d+2*h+1}")
        a(f"buffer_store_dwordx4 v[{o}:{o+3}], v{G+13}, {WS}, s24 offen offset:{m*1024} sc1")
        a(f"buffer_store_dword v{o+4}, v{G+14}, {WS}, s24 offen offset:{m*1024} sc1")
    signal(a, 44)
    return B

def emit_loader(L, plan, p1B, name):
    npre = CFG.get("npre", 10)
    pre = p1B[:npre]
    L(f"""
    s_mul_i32 s44, s{S_C}, {160*KB}
    s_add_u32 s44, s44, {W1F}
    s_mul_i32 s46, s{S_C}, {240*KB}
    s_add_u32 s46, s46, {W3F}
    s_lshr_b32 s34, s{S_C}, 1
    s_mul_i32 s45, s34, {100*KB}
    s_add_u32 s45, s45, {W2F}
    s_mul_i32 s47, s34, {240*KB}
    s_add_u32 s47, s47, {W4F}
    """)
    def abases():
        L(f"s_mul_i32 s34, s{S_RB}, {160*KB}")
        L(f"s_and_b32 s35, s{S_C}, 1\ns_lshl_b32 s35, s35, 12")
        layer_off(L, 40, XF); L("s_add_u32 s40, s40, s34")
        layer_off(L, 41, OF); L("s_add_u32 s41, s41, s34\ns_add_u32 s41, s41, s35")
        layer_off(L, 42, X1F); L("s_add_u32 s42, s42, s34")
        layer_off(L, 43, HF); L(f"s_mul_i32 s34, s{S_RB}, {384*KB}\ns_add_u32 s43, s43, s34\ns_add_u32 s43, s43, s35")
    def body(b_from, b_to, todo, issued, tagp=""):
        for b in range(b_from, b_to):
            ahead, budget, thr = plan.pol[b]
            spent = 0
            while todo:
                beyond = sum(it.nkb for (it, _) in issued if it.need > b and it.t_issue >= b-1)
                seen = set(); cand = []
                for x in todo:
                    if x.kind not in seen and x.avail <= b-1: cand.append(x)
                    seen.add(x.kind)
                if todo[0].need <= b: assert todo[0] in cand, ("item needed but no space", todo[0].kind, todo[0].need, todo[0].avail, b)
                if not cand: break
                it = cand[0]
                if it.need > b and beyond >= ahead and spent + it.nkb > budget: break
                todo.remove(it); it.t_issue = b
                issued.append((it, emit_item(L, it, thr))); spent += it.nkb
            last = -1
            for i, (it, n) in enumerate(issued):
                if it.need <= b: last = i
            if last >= 0:
                cnt = sum(n for (_, n) in issued[last+1:])
                L(f"s_waitcnt vmcnt({min(cnt, 63)})")
                del issued[:last+1]
            L("s_barrier" + tagp)
            if not tagp: stamp(L, plan.names.get(b, f"{b}"))
    abases()
    JOIN = 12
    p1items = [it for it in plan.items if it.need < JOIN]
    rest = sorted([it for it in plan.items if it.need >= JOIN], key=lambda it: (it.need, it.kind))
    nst0 = len(getattr(L, "st", []))
    t0 = sorted(p1items, key=lambda it: (it.need, it.kind)); i0 = []
    body(0, JOIN, t0, i0)
    assert not t0 and not i0
    L(f"{name}_ljoin:")
    iss = []
    body(JOIN, plan.nbar, rest, iss)
    assert not rest and not iss
    stamp_flush(L)
    L(f"s_cmp_lg_u32 s{S_L}, 0\ns_cbranch_scc1 {name}_end")
    L(f"s_mov_b32 s{S_L}, 1")
    abases()
    i1 = []
    for it in pre:
        it.t_issue = -5
        i1.append((it, emit_item(L, it, 10)))
    t1 = sorted([it for it in p1items if it not in pre], key=lambda it: (it.need, it.kind))
    if CFG["stamp"]:
        save = L.st; L.st = L.st[:nst0]
        body(0, JOIN, t1, i1, "")
        L.st = save
        L.extra_bar = JOIN
    else:
        body(0, JOIN, t1, i1, " ; alt")
        L.extra_bar = 0
    assert not t1 and not i1
    L(f"s_branch {name}_ljoin")

def prologue(a, name):
    mapping = CFG["mapping"]
    a(f"""
    s_cmp_ge_u32 s2, 256
    s_cbranch_scc1 {name}_end
    s_load_dwordx2 s[4:5], s[0:1], 72
    s_load_dwordx2 s[6:7], s[0:1], 56
    v_lshrrev_b32 v1, 6, v0
    v_readfirstlane_b32 s{S_W}, v1
    v_and_b32 v1, 63, v0
    v_lshlrev_b32 v1, 4, v1
    s_and_b32 s20, s2, 7
    s_lshr_b32 s21, s2, 3
    s_mov_b32 s{S_L}, 0
    """)
    if mapping == 0:
        a(f"""s_and_b32 s22, s20, 1
        s_lshl_b32 s22, s22, 3
        s_and_b32 s23, s21, 7
        s_add_u32 s{S_RB}, s22, s23
        s_lshr_b32 s22, s20, 1
        s_lshl_b32 s22, s22, 2
        s_lshr_b32 s23, s21, 3
        s_add_u32 s{S_C}, s22, s23""")
    elif mapping == 1:
        a(f"""s_and_b32 s22, s20, 3
        s_lshl_b32 s22, s22, 2
        s_and_b32 s23, s21, 3
        s_add_u32 s{S_RB}, s22, s23
        s_lshr_b32 s22, s20, 2
        s_lshl_b32 s22, s22, 3
        s_lshr_b32 s23, s21, 2
        s_add_u32 s{S_C}, s22, s23""")
    else:
        a(f"""s_lshl_b32 s22, s20, 1
        s_and_b32 s23, s21, 1
        s_add_u32 s{S_RB}, s22, s23
        s_lshr_b32 s{S_C}, s21, 1""")
    a(f"""
    s_mov_b32 s10, {WS_SIZE}
    s_mov_b32 s11, 0x20000
    s_mov_b32 s14, {XSZ}
    s_mov_b32 s15, 0x20000
    s_waitcnt lgkmcnt(0)
    s_mov_b32 s8, s4
    s_and_b32 s9, s5, 0xffff
    s_mov_b32 s12, s6
    s_and_b32 s13, s7, 0xffff
    """)

def mega(name):
    C, L, M = Asm(), Asm(), Asm()
    C.lab = 1000; L.lab = 2000; M.lab = 3000
    C.streg, C.sttmp = 0, 2
    L.streg, L.sttmp = 200, 201
    M.streg, M.sttmp = 250, 251
    plan = Plan()
    C("v_and_b32 v5, 15, v0\nv_bfe_u32 v6, v0, 4, 2")
    L("s_setprio 3")
    L(f"s_sub_u32 s30, s{S_W}, 4\ns_lshl_b32 s30, s30, 10\nv_add_u32 v1, s30, v1")
    M(f"""s_setprio 3
    s_mov_b32 s50, 0
    s_lshl_b32 s20, s{S_RB}, 4
    s_add_u32 s20, s20, s{S_C}
    s_lshl_b32 s20, s20, 7
    s_add_u32 s20, s20, {FL_CL}
    v_mov_b32 v10, s20
    v_mov_b32 v16, 0
    v_mov_b32 v17, 0
    v_mov_b32 v18, {L_KVZ}
    ds_write_b64 v18, v[16:17]
    ds_write_b64 v18, v[16:17] offset:{L_SYNC-L_KVZ}
    s_cmp_lg_u32 s{S_W}, 7
    s_cbranch_scc1 {name}_mloop""")
    cs_issue(M, CS1P, 8, 32)
    cs_issue(M, CS3P, 12, 112)
    M("s_waitcnt lgkmcnt(0)")
    for x in (C, L, M): stamp(x, "start")
    C(f"{name}_cloop:"); M(f"{name}_mloop:")
    p1B = p1(plan, C, M)
    p24(plan, C, M, 2)
    p3(plan, C, M)
    p24(plan, C, M, 4, f"{name}_cend")
    stamp_flush(C)
    C(f"s_mov_b32 s{S_L}, 1\ns_branch {name}_cloop")
    C(f"{name}_cend:")
    if CFG["stamp"]:
        n = len(C.st); C.st = C.st[:-2]
        stamp(C, "stored"); C("s_waitcnt vmcnt(0)"); stamp(C, "signalled")
        stamp_flush(C)
    stamp_flush(M)
    M(f"s_cmp_lg_u32 s{S_L}, 0\ns_cbranch_scc1 {name}_end\ns_mov_b32 s{S_L}, 1\ns_branch {name}_mloop")
    emit_loader(L, plan, p1B, name)
    a = Asm()
    prologue(a, name)
    a(f"s_cmp_ge_u32 s{S_W}, 6\ns_cbranch_scc1 {name}_misc\ns_cmp_lt_u32 s{S_W}, 4\ns_cbranch_scc1 {name}_comp")
    t = a.text(True) + L.text(True) + f"{name}_misc:\n" + M.text(True) + f"{name}_comp:\n" + C.text(True) + f"{name}_end:\n    s_endpgm\n"
    for x in (C, L, M):
        n = sum(1 for l in x.l if l.strip() == "s_barrier") - getattr(x, "extra_bar", 0)
        assert n == plan.nbar, (n, plan.nbar)
    tags = [getattr(x, "st", []) for x in (C, L, M)]
    return t, tags

def build(path):
    import gen_k0
    s = f"; @launch kernel=k0_kernel grid=({gen_k0.K0_WGS},1,1) block=(256,1,1) lds={gen_k0.K0_LDS}\n"
    s += f"; @launch kernel=main_kernel grid=(256,1,1) block=(512,1,1) lds={LDS_TOTAL}\n"
    s += ".amdgcn_target \"amdgcn-amd-amdhsa--gfx950\"\n"
    s += kernel_header("k0_kernel") + gen_k0.gen_k0("k0_kernel")
    t, tags = mega("main_kernel")
    s += kernel_header("main_kernel") + t
    s += kernel_desc("k0_kernel", 104, 72, 104) + kernel_desc("main_kernel", 256, 102, 256)
    open(path, "w").write(s)
    json.dump(tags, open(path + ".tags", "w"))

if __name__ == "__main__":
    if len(sys.argv) > 2: CFG.update(eval("dict(" + sys.argv[2] + ")"))
    build(sys.argv[1])
```
